```python
import torch

def _softmax(x, axis=-1):
    return torch.softmax(x, dim=axis)
def _gelu(x):
    return torch.nn.functional.gelu(x, approximate="tanh")
def _silu(x):
    return torch.nn.functional.silu(x)
def _sigmoid(x):
    return torch.sigmoid(x)
def _layernorm(x, axis=-1, eps=1e-5):
    m = x.mean(dim=axis, keepdim=True)
    v = x.var(dim=axis, keepdim=True, unbiased=False)
    return (x - m) / torch.sqrt(v + eps)
def _scatter_add(tgt, idx, src, axis=0):
    return tgt.clone().index_add_(axis, idx, src)
def _segment_sum(src, seg, n):
    out = torch.zeros((n,) + src.shape[1:], dtype=src.dtype)
    return out.index_add_(0, seg, src)
def _pad(x, pw):
    flat = tuple(v for pair in reversed(pw) for v in pair)
    return torch.nn.functional.pad(x, flat)

kernel_name = 'recurrent_scan__spectral_fnet__geglu_ffn__prompt'

def setup_inputs():

    _w = (lambda a: (lambda t: t.to(torch.bfloat16) if t.is_floating_point() else t)(torch.as_tensor(a)))
    def _A_setup():
        B, S, D = 1, 2048, 512
        ns = torch.arange(S)[:, None] * torch.arange(S)[None, :]
        nd = torch.arange(D)[:, None] * torch.arange(D)[None, :]
        Ws_re = torch.cos(-2.0 * torch.pi * ns / S).to(float)
        Ws_im = torch.sin(-2.0 * torch.pi * ns / S).to(float)
        Wd_re = torch.cos(-2.0 * torch.pi * nd / D).to(float)
        Wd_im = torch.sin(-2.0 * torch.pi * nd / D).to(float)
        return {
            "x": _w((lambda *s: torch.randn(*s, dtype=torch.bfloat16) * 0.05)(B, S, D)),
            "dft_seq_re": _w(Ws_re),
            "dft_seq_im": _w(Ws_im),
            "dft_hid_re": _w(Wd_re),
            "dft_hid_im": _w(Wd_im),
        }
    _A_in = _A_setup()

    def _B_setup():
        B, S, D, F = 1, 2048, 512, 1792
        return {
            "x": _w((lambda *s: torch.randn(*s, dtype=torch.bfloat16) * 0.05)(B, S, D)),
            "w_gate": _w((lambda *s: torch.randn(*s, dtype=torch.bfloat16) * 0.05)(D, F)),
            "w_up": _w((lambda *s: torch.randn(*s, dtype=torch.bfloat16) * 0.05)(D, F)),
            "w_down": _w((lambda *s: torch.randn(*s, dtype=torch.bfloat16) * 0.05)(F, D)),
        }
    _B_in = _B_setup()

    return {
        "A_x": _A_in["x"],
        "A_dft_seq_re": _A_in["dft_seq_re"],
        "A_dft_seq_im": _A_in["dft_seq_im"],
        "A_dft_hid_re": _A_in["dft_hid_re"],
        "A_dft_hid_im": _A_in["dft_hid_im"],
        "B_x": _B_in["x"],
        "B_w_gate": _B_in["w_gate"],
        "B_w_up": _B_in["w_up"],
        "B_w_down": _B_in["w_down"],
    }

def reference(A_x, A_dft_seq_re, A_dft_seq_im, A_dft_hid_re, A_dft_hid_im, B_x, B_w_gate, B_w_up, B_w_down):
    def _A_ref(x, dft_seq_re, dft_seq_im, dft_hid_re, dft_hid_im):
        a = torch.einsum("bsd,ed->bse", x, dft_hid_re)
        b = torch.einsum("bsd,ed->bse", x, dft_hid_im)
        y = torch.einsum("ts,bse->bte", dft_seq_re, a) - torch.einsum("ts,bse->bte", dft_seq_im, b)
        return y

    def _B_ref(x, w_gate, w_up, w_down):
        return (_gelu(x @ w_gate) * (x @ w_up)) @ w_down

    x = A_x
    xn = _layernorm(x, axis=-1)
    s = _A_ref(xn, A_dft_seq_re, A_dft_seq_im, A_dft_hid_re, A_dft_hid_im)
    g = _silu(_B_ref(xn, B_w_gate, B_w_up, B_w_down))
    return x + s * g
```

```python
import re

def _regs(tok):
    tok = tok.strip()
    tok = re.sub(r'^-', '', tok)
    m = re.match(r'^abs\((.*)\)$', tok)
    if m: tok = m.group(1)
    m = re.match(r'^\|(.*)\|$', tok)
    if m: tok = m.group(1)
    m = re.match(r'^([vas])(\d+)$', tok)
    if m: return {(m.group(1), int(m.group(2)))}
    m = re.match(r'^([vas])\[(\d+):(\d+)\]$', tok)
    if m: return {(m.group(1), i) for i in range(int(m.group(2)), int(m.group(3)) + 1)}
    if tok == 'vcc': return {('s', 'vcc')}
    if tok in ('vcc_lo', 'vcc_hi'): return {('s', 'vcc')}
    if tok == 'm0': return {('s', 'm0')}
    if tok == 'exec': return {('s', 'exec')}
    return set()

TRANS = ('v_exp_f32', 'v_log_f32', 'v_rcp_f32', 'v_rsq_f32', 'v_sqrt_f32', 'v_sin_f32', 'v_cos_f32')

class Ins:
    def __init__(self, text):
        self.text = text
        t = text.split(';')[0].strip()
        self.label = t.endswith(':')
        self.op = t.split()[0] if t and not self.label else ''
        rest = t[len(self.op):].strip() if self.op else ''
        ops = []; depth = 0; cur = ''
        for ch in rest:
            if ch in '[(': depth += 1
            if ch in '])': depth -= 1
            if ch == ',' and depth == 0: ops.append(cur.strip()); cur = ''
            else: cur += ch
        if cur.strip(): ops.append(cur.strip())
        self.mods = ''
        if ops:
            parts = ops[-1].split(None, 1)
            ops[-1] = parts[0]
            if len(parts) > 1: self.mods = parts[1]
        self.ops = ops
        op = self.op
        self.kind = 'other'
        self.w = set(); self.r = set()
        self.srcC = set(); self.srcAB = set()
        R = [_regs(o) for o in ops]
        allr = lambda lst: set().union(*lst) if lst else set()
        if op.startswith('v_mfma'):
            self.kind = 'mfma'
            self.w = R[0]; self.srcAB = R[1] | R[2]; self.srcC = R[3]; self.r = self.srcAB | self.srcC
            self.passes = 8 if '32x32x16' in op else 4
        elif op.startswith('v_'):
            self.kind = 'valu'
            base = re.sub(r'_(e32|e64|dpp|sdwa)$', '', op)
            self.base = base
            if base.startswith('v_cmp'):
                self.w = R[0]; self.r = allr(R[1:])
            elif base in ('v_swap_b32', 'v_permlane32_swap_b32', 'v_permlane16_swap_b32'):
                self.w = R[0] | R[1]; self.r = R[0] | R[1]
            elif base in ('v_add_co_u32', 'v_sub_co_u32', 'v_addc_co_u32', 'v_subb_co_u32'):
                self.w = R[0] | R[1]; self.r = allr(R[2:])
            elif base in ('v_fmac_f32', 'v_dot2c_f32_bf16', 'v_pk_fmac_f16'):
                self.w = R[0]; self.r = allr(R)
            else:
                self.w = R[0]; self.r = allr(R[1:])
            self.trans = base in TRANS
            self.dot = base.startswith('v_dot')
        elif op.startswith('ds_'):
            self.kind = 'ds'
            if op.startswith('ds_read') or 'permute' in op or op.startswith('ds_swizzle'):
                self.w = R[0]; self.r = allr(R[1:])
            else:
                self.r = allr(R)
        elif op.startswith('buffer_') or op.startswith('global_') or op.startswith('flat_'):
            self.kind = 'vmem'
            islds = ('lds' in self.mods.split()) or ('_lds_' in op)
            self.lds = islds
            if islds:
                self.r = allr(R) | {('s', 'm0')}
            elif 'load' in op:
                self.w = R[0]; self.r = allr(R[1:])
            elif 'atomic' in op and 'sc0' in self.mods.split() :
                self.w = R[0]; self.r = allr(R)
            else:
                self.r = allr(R)
            self.widestore = ('store' in op) and (op.endswith('x4') or op.endswith('x3'))
            if self.widestore:
                self.sdata = R[0] if op.startswith('buffer_') else R[1]
        elif op.startswith('s_'):
            self.kind = 'salu'
            if op.startswith('s_cmp') or op.startswith('s_cbranch') or op in ('s_branch', 's_waitcnt', 's_barrier', 's_nop', 's_endpgm', 's_setprio', 's_sleep'):
                self.r = allr(R)
            else:
                self.w = R[0] if R else set(); self.r = allr(R[1:])
                if 'saveexec' in op: self.w |= {('s', 'exec')}
        self.states = 1
        if op == 's_nop': self.states = int(ops[0], 0) + 1
        if self.label or not op: self.states = 0

def required(p, c):
    need = 0
    vw = {x for x in p.w if x[0] in 'va'}
    sw = {x for x in p.w if x[0] == 's'}
    if p.kind == 'mfma':
        big = {8: 12, 4: 8}[p.passes]
        if c.kind == 'mfma':
            if p.w & c.srcAB: need = max(need, big)
            if p.w & c.srcC:
                if c.srcC == p.w and c.passes == p.passes: pass
                else: need = max(need, {8: 10, 4: 6}[p.passes])
            elif p.w & c.w:
                need = max(need, {8: 10, 4: 6}[p.passes])
        elif c.kind in ('valu', 'ds', 'vmem'):
            if p.w & (c.r | c.w): need = max(need, big)
        if c.kind == 'valu' and (p.srcC & c.w):
            need = max(need, {8: 7, 4: 3}[p.passes])
    if p.kind == 'valu':
        if c.kind == 'mfma' and (vw & c.r): need = max(need, 3 if p.dot else 2)
        if c.kind == 'valu':
            if c.base.startswith('v_permlane') and (vw & c.r): need = max(need, 2)
            if c.base in ('v_readfirstlane_b32', 'v_readlane_b32') and (vw & c.r): need = max(need, 1)
            if p.trans and not c.trans and (vw & c.r): need = max(need, 1)
            if 'dpp' in c.op or 'row_' in c.mods or 'quad_perm' in c.mods:
                if vw & c.r: need = max(need, 2)
            if sw & c.r: need = max(need, 2)
            if p.dot and (vw & (c.r | c.w)):
                if c.base == p.base and not (vw & set().union(*[_regs(o) for o in c.ops[1:3]])): pass
                else: need = max(need, 3)
        if c.kind in ('vmem', 'ds') and p.dot and (vw & c.r): need = max(need, 3)
        if c.kind == 'vmem' and (sw & c.r): need = max(need, 5)
        if c.kind == 'salu' and (sw & c.r): need = max(need, 1)
    if p.kind == 'salu':
        if ('s', 'm0') in p.w and c.kind == 'vmem' and getattr(c, 'lds', False): need = max(need, 1)
    if p.kind == 'vmem' and getattr(p, 'widestore', False):
        if p.sdata & c.w: need = max(need, 2 if c.kind == 'valu' else 1)
    return need

class Asm:
    def __init__(self):
        self.lines = []
    def __call__(self, text):
        for ln in text.split('\n'):
            ln = ln.strip()
            if ln: self.lines.append(ln)
    def c(self, text):
        self.lines.append('; ' + text)
    def finish(self, pad=True):
        out = []; hist = []
        npad = 0
        for ln in self.lines:
            if ln.startswith(';') or ln.startswith('.'):
                out.append(ln); continue
            ins = Ins(ln)
            if pad and ins.states:
                dist = 0; need = 0
                for p in reversed(hist):
                    rq = required(p, ins)
                    if rq > dist: need = max(need, rq - dist)
                    dist += p.states
                    if dist >= 20: break
                if need:
                    n = need
                    while n > 0:
                        k = min(n, 16)
                        nop = Ins(f's_nop {k-1}')
                        out.append(f'    s_nop {k-1}'); hist.append(nop); n -= k
                    npad += 1
            hist.append(ins)
            if len(hist) > 64: hist = hist[-40:]
            out.append(ln if ins.label else '    ' + ln)
        self.npad = npad
        return '\n'.join(out) + '\n'
```

```python
import sys, struct, math
sys.path.insert(0, 'work')
from asmlib import Asm

def f2u(x): return struct.unpack('<I', struct.pack('<f', x))[0]
def fx(x): return '0x%08x' % f2u(x)

STAMP = '--stamp' in sys.argv
OUT = [a for a in sys.argv[1:] if not a.startswith('--')]
OUT = OUT[0] if OUT else 'recurrent_scan__spectral_fnet__geglu_ffn__prompt.s'

H_OFF = 0
Z_OFF = 0x800000
EP = 288
WS_BYTES = 0x1000000
STAMP_OFF = 0x1000000

def vr(b, n=1): return f'v{b}' if n == 1 else f'v[{b}:{b+n-1}]'
def ar(b, n=1): return f'a{b}' if n == 1 else f'a[{b}:{b+n-1}]'
def sr(b, n=1): return f's{b}' if n == 1 else f's[{b}:{b+n-1}]'

P_X, P_SRE, P_SIM, P_HRE, P_HIM, P_BX, P_WG, P_WU, P_WD, P_OUT, P_DBG, P_WS = [16 + 2 * i for i in range(12)]

def srd(a, d, p, nbytes):
    a(f's_mov_b32 s{d}, s{p}')
    a(f's_mov_b32 s{d+1}, s{p+1}')
    a(f's_mov_b32 s{d+2}, 0x{nbytes:x}')
    a(f's_mov_b32 s{d+3}, 0x00020000')

def stamp(a, idx):
    if STAMP:
        a(f's_memrealtime s[{70+2*idx}:{71+2*idx}]')

def stamp_store(a, n, kidx, wave_sgpr, tmpv, waves_per_wg):
    if not STAMP: return
    a('s_waitcnt lgkmcnt(0)')
    a(f's_add_u32 s64, s{P_WS}, 0x{STAMP_OFF + kidx*0x20000:x}')
    a(f's_addc_u32 s65, s{P_WS+1}, 0')
    a('s_mov_b32 s66, 0x20000')
    a('s_mov_b32 s67, 0x00020000')
    a(f's_lshl_b32 s68, s2, 3')
    a(f's_add_u32 s68, s68, s{wave_sgpr}')
    a(f's_lshl_b32 s68, s68, 6')
    a(f'v_mov_b32 v{tmpv}, s68')
    for i in range(n):
        a(f'v_mov_b32 v{tmpv+1}, s{70+2*i}')
        a(f'buffer_store_dword v{tmpv+1}, v{tmpv}, s[64:67], 0 offen offset:{4*i}')
        a('s_nop 1')
    a('s_waitcnt vmcnt(0)')

def code_prefetch(a, label_start, nbytes, vtmp, tag):
    a(f's_getpc_b64 s[12:13]')
    a(f'v_lshlrev_b32 v{vtmp}, 7, v0')
    a(f'v_cmp_gt_u32 vcc, {nbytes}, v{vtmp}')
    a('s_and_saveexec_b64 s[14:15], vcc')
    a(f's_cbranch_execz L_nopf_{tag}')
    a(f'global_load_dword v{vtmp+1}, v{vtmp}, s[12:13]')
    a(f'L_nopf_{tag}:')
    a('s_mov_b64 exec, s[14:15]')

XS = 0; CS = 8192; XB = 12288; WB = XB + 3 * 16384
K1_LDS = WB + 3 * 32768
S_W, S_WR, S_WC, S_RB, S_CB, S_MX, S_MW = 3, 4, 5, 6, 7, 8, 9
SRD_X, SRD_G, SRD_U, SRD_WS, SRD_SRE, SRD_SIM = 40, 44, 48, 52, 56, 60
V_XG = 10; V_WG = 12
V_XR = 20; V_WR = 24; V_WR2 = 28
V_ST = 32
V_FR = 40
V_ACC = 72
V_T = 136
V_CORR = 232
V_ONE = 38

def acc(i, mh): return V_ACC + 16 * (2 * i + mh)
def frX(s, i): return V_FR + 16 * s + 4 * i
def frW(s, mh): return V_FR + 16 * s + 8 + 4 * mh

def k1_dma(a, step, dft):
    slot = step % 3
    g = []
    for u in range(2):
        g.append([f's_add_u32 m0, s{S_MX}, {slot*16384 + u*1024 - step*128}',
                  f'buffer_load_dwordx4 v{V_XG+u}, s[{SRD_X}:{SRD_X+3}], 0 offen offset:{step*128} lds'])
    for mh in range(2):
        for u in range(2):
            if dft:
                g.append([f's_add_u32 m0, s{S_MW}, {slot*32768 + mh*16384 + u*1024 - step*128}',
                          f'global_load_lds_dwordx4 v[{V_WG+4*mh+2*u}:{V_WG+4*mh+2*u+1}], off offset:{step*128}'])
            else:
                srdw = SRD_G if mh == 0 else SRD_U
                pre = [f's_mov_b32 s{10+u}, {step*64*3584 + u*4*3584}'] if mh == 0 else []
                g.append(pre + [f's_add_u32 m0, s{S_MW}, {slot*32768 + mh*16384 + u*1024}',
                          f'buffer_load_dwordx4 v{V_WG}, s[{srdw}:{srdw+3}], s{10+u} offen lds'])
    return g

def k1_reads(a, t, dft):
    i, jj = divmod(t, 4); slot = i % 3; s = t % 2
    for grp in range(2):
        a(f'ds_read_b128 {vr(frX(s,grp),4)}, v{V_XR+jj} offset:{slot*16384 + grp*4096}')
    wr = (V_WR2 if slot == 2 else V_WR) + jj
    so = 0 if slot == 2 else slot * 32768
    for mh in range(2):
        if dft:
            a(f'ds_read_b128 {vr(frW(s,mh),4)}, v{wr} offset:{so + mh*16384}')
        else:
            a(f'ds_read_b64_tr_b16 {vr(frW(s,mh),2)}, v{wr} offset:{so + mh*16384}')
            a(f'ds_read_b64_tr_b16 {vr(frW(s,mh)+2,2)}, v{wr} offset:{so + mh*16384 + 1024}')

def k1_dots(t):
    i, jj = divmod(t, 4); s = t % 2
    d = []
    def colsum():
        for r in range(4):
            for mh in range(2):
                d.append(f'v_dot2c_f32_bf16 v{V_ST+4+mh}, v{V_ONE}, v{frW(s,mh)+r}')
    def sumx():
        for r in range(4):
            for g in range(2):
                d.append(f'v_dot2c_f32_bf16 v{V_ST+g}, v{V_ONE}, v{frX(s,g)+r}')
    def sumsq():
        for r in range(4):
            for g in range(2):
                d.append(f'v_dot2c_f32_bf16 v{V_ST+2+g}, v{frX(s,g)+r}, v{frX(s,g)+r}')
    if i < 7:
        if jj < 2: colsum()
        elif jj == 2: sumx()
        else: sumsq()
    else:
        if jj == 0: colsum(); sumx()
        elif jj == 1: colsum(); sumsq()
    return d

def k1_mfmas(a, t, dft, extra=None):
    s = t % 2
    fill = [[x] for x in k1_dots(t)]
    if extra: fill = extra + fill
    ms = []
    for i in range(2):
        for mh in range(2):
            d = vr(acc(i, mh), 16)
            c = '0' if t == 0 else d
            A, B = (frX(s, i), frW(s, mh)) if dft else (frW(s, mh), frX(s, i))
            ms.append(f'v_mfma_f32_32x32x16_bf16 {d}, {vr(A,4)}, {vr(B,4)}, {c}')
    n = len(fill)
    for k, m in enumerate(ms):
        a(m)
        for grp in fill[k * n // 4:(k + 1) * n // 4]:
            for x in grp: a(x)

def k1_main(a, dft):
    nrd = 4 if dft else 6
    nF = 32 if dft else 0
    for st in range(3):
        for grp in k1_dma(a, st, dft):
            for x in grp: a(x)
    if dft:
        a(f'v_and_b32 v2, 31, v1')
        a(f'v_lshlrev_b32 v2, 1, v2')
        a(f'v_lshrrev_b32 v3, 5, v1')
        a(f'v_lshlrev_b32 v3, 20, v3')
        a(f'v_add_u32 v2, v2, v3')
        for m, srdf in enumerate((SRD_SRE, SRD_SIM)):
            for idx in range(16):
                kk, j = divmod(idx, 8)
                s1 = 16 * kk + 8 * (j // 4) + (j % 4)
                a(f's_mov_b32 s10, {s1 * 64 * 4096}')
                a(f'buffer_load_ushort v{V_T+16*m+idx}, v2, s[{srdf}:{srdf+3}], s10 offen')
    for r in range(6): a(f'v_mov_b32 v{V_ST+r}, 0')
    for r in range(16): a(f'v_mov_b32 v{V_CORR+r}, 0')
    a(f'v_mov_b32 v{V_ONE}, 0x3f803f80')
    vm = {0: 12 + nF, 1: 6 + nF, 2: 6 + nF, 3: 6, 4: 6, 5: 6, 6: 6, 7: 0}
    for i in range(8):
        a.c(f'---- K-step {i}')
        a(f's_waitcnt vmcnt({vm[i]}) lgkmcnt(0)')
        a('s_barrier')
        if i == 0: stamp(a, 1)
        k1_reads(a, 4 * i, dft)
        if i > 0:
            extra = k1_dma(a, i + 2, dft) if i + 2 <= 7 else None
            k1_mfmas(a, 4 * i - 1, dft, extra)
        k1_reads(a, 4 * i + 1, dft)
        a(f's_waitcnt lgkmcnt({nrd})')
        k1_mfmas(a, 4 * i, dft)
        k1_reads(a, 4 * i + 2, dft)
        a(f's_waitcnt lgkmcnt({nrd})')
        k1_mfmas(a, 4 * i + 1, dft)
        if i == 7:
            a(f'v_lshlrev_b32 v2, 4, v0')
            a(f'v_lshlrev_b32 v3, 3, v0')
            a(f'ds_write_b128 v2, {vr(V_ST,4)} offset:{XS}')
            a(f'ds_write_b64 v3, {vr(V_ST+4,2)} offset:{CS}')
        k1_reads(a, 4 * i + 3, dft)
        a(f's_waitcnt lgkmcnt({nrd})')
        k1_mfmas(a, 4 * i + 2, dft)
    a('s_barrier')
    T = V_T + 32
    a(f'v_and_b32 v2, 31, v1')
    a(f'v_lshlrev_b32 v2, 4, v2')
    a(f's_lshl_b32 s10, s{S_WR}, 12')
    a(f'v_add_u32 v2, s10, v2')
    a(f'v_xor_b32 v3, 0x800, v3')
    for p in range(8):
        a(f'ds_read_b128 {vr(T+4*p,4)}, v2 offset:{XS + p*512}')
    a(f'ds_read_b64 {vr(T+32,2)}, v3 offset:{CS}')
    a(f's_waitcnt lgkmcnt(9)')
    k1_mfmas(a, 31, dft)
    a(f's_waitcnt lgkmcnt(0)')
    stamp(a, 2)
    for st in (4, 2, 1):
        for p in range(st):
            for h in range(2):
                a(f'v_pk_add_f32 {vr(T+4*p+2*h,2)}, {vr(T+4*p+2*h,2)}, {vr(T+4*(p+st)+2*h,2)}')
    a(f's_mov_b32 s10, {fx(1.0/512)}')
    M = T + 4; V = T + 6; C = T + 8; SD = T + 12; RR = T + 14
    for i in range(2):
        a(f'v_mul_f32 v{M+i}, s10, v{T+i}')
        a(f'v_mul_f32 v{V+i}, s10, v{T+2+i}')
        a(f'v_add_f32 v{C+i}, v{V_ST+4+i}, v{T+32+i}')
    for i in range(2):
        a(f'v_fma_f32 v{V+i}, -v{M+i}, v{M+i}, v{V+i}')
        a(f'v_cvt_pk_bf16_f32 v{V_CORR+4*i}, -v{M+i}, -v{M+i}')
        a(f'v_cvt_pk_bf16_f32 v{C+2+i}, v{C+i}, v{C+i}')
    for i in range(2):
        a(f'v_max_f32 v{V+i}, 0, v{V+i}')
        a(f'v_lshlrev_b32 v{C+2+i}, 16, v{C+2+i}')
    for i in range(2):
        a(f'v_sub_f32 v{C+i}, v{C+i}, v{C+2+i}')
    for i in range(2):
        a(f'v_cvt_pk_bf16_f32 v{V_CORR+8+4*i}, v{C+2+i}, v{C+i}')
    for i in range(2):
        for mh in range(2):
            d = vr(acc(i, mh), 16)
            Mx = V_CORR + 4 * i; Cx = V_CORR + 8 + 4 * mh
            A, B = (Mx, Cx) if dft else (Cx, Mx)
            a(f'v_mfma_f32_32x32x16_bf16 {d}, {vr(A,4)}, {vr(B,4)}, {d}')
    def rnd2(x):
        a(f'v_cvt_pk_bf16_f32 v{x+1}, v{x}, v{x+1}')
        a(f'v_lshlrev_b32 v{x}, 16, v{x+1}')
        a(f'v_and_b32 v{x+1}, 0xffff0000, v{x+1}')
    rnd2(V)
    for i in range(2): a(f'v_add_f32 v{V+i}, {fx(1e-5)}, v{V+i}')
    rnd2(V)
    for i in range(2): a(f'v_sqrt_f32 v{SD+i}, v{V+i}')
    rnd2(SD)
    for i in range(2): a(f'v_rcp_f32 v{RR+i}, v{SD+i}')
    return SD, RR, T

def k1_epilogue_ffn(a, SD, RR, T):
    c1 = 2.0 * math.sqrt(2.0 / math.pi) * math.log2(math.e); c2 = c1 * 0.044715
    K1r = T + 16; K2r = T + 18; IR2 = T + 20
    for i in range(2):
        a(f'v_mul_f32 v{K1r+i}, {fx(-c1)}, v{RR+i}')
        a(f'v_mul_f32 v{K2r+i}, v{RR+i}, v{RR+i}')
        a(f'v_mul_f32 v{IR2+i}, v{SD+i}, v{SD+i}')
    for i in range(2):
        a(f'v_mul_f32 v{K2r+i}, v{K2r+i}, v{RR+i}')
    for i in range(2):
        a(f'v_mul_f32 v{K2r+i}, {fx(-c2)}, v{K2r+i}')
    a(f'v_lshlrev_b32 v2, 4, v1')
    a(f's_lshl_b32 s10, s{S_RB}, 2')
    a(f's_lshl_b32 s11, s{S_WR}, 1')
    a(f's_add_u32 s10, s10, s11')
    a(f's_mul_i32 s10, s10, 112')
    a(f's_lshl_b32 s11, s{S_CB}, 2')
    a(f's_add_u32 s11, s11, s{S_WC}')
    a(f's_lshl_b32 s11, s11, 1')
    a(f's_add_u32 s10, s10, s11')
    a(f's_lshl_b32 s10, s10, 10')
    a(f's_add_u32 s11, s10, {112*1024}')
    TT = V_T
    H = V_FR
    for i in range(2):
        for half in range(2):
            rs = range(8 * half, 8 * half + 8)
            G = lambda r: acc(i, 0) + r
            U = lambda r: acc(i, 1) + r
            t = lambda r: TT + (r % 8)
            p = lambda r: TT + 8 + (r % 8)
            for r in rs: a(f'v_mul_f32 v{t(r)}, v{G(r)}, v{G(r)}')
            for r in rs: a(f'v_fma_f32 v{t(r)}, v{t(r)}, v{K2r+i}, v{K1r+i}')
            for r in rs: a(f'v_mul_f32 v{t(r)}, v{t(r)}, v{G(r)}')
            for r in rs:
                a(f'v_exp_f32 v{t(r)}, v{t(r)}')
                a(f'v_mul_f32 v{p(r)}, v{G(r)}, v{U(r)}')
            for r in rs: a(f'v_fma_f32 v{t(r)}, v{t(r)}, v{IR2+i}, v{IR2+i}')
            for r in rs: a(f'v_rcp_f32 v{t(r)}, v{t(r)}')
            for r in rs: a(f'v_mul_f32 v{p(r)}, v{p(r)}, v{t(r)}')
            hb = H + 8 * i + 4 * half
            for k in range(4):
                r = 8 * half + 2 * k
                a(f'v_cvt_pk_bf16_f32 v{hb+k}, v{p(r)}, v{p(r+1)}')
            a(f'buffer_store_dwordx4 {vr(hb,4)}, v2, s[{SRD_WS}:{SRD_WS+3}], s{10+i} offen offset:{1024*half}')

def k1_epilogue_dft(a, SD, RR, T):
    RS = XB + 2 * 16384
    a(f'v_and_b32 v2, 31, v1')
    a(f'v_lshlrev_b32 v2, 2, v2')
    a(f's_lshl_b32 s10, s{S_W}, 8')
    a(f'v_add_u32 v2, s10, v2')
    a(f'v_lshrrev_b32 v3, 5, v1')
    a(f'v_lshlrev_b32 v3, 4, v3')
    a(f'v_add_u32 v3, s10, v3')
    for i in range(2):
        a(f'ds_write_b32 v2, v{RR+i} offset:{RS + 128*i}')
    RV = T + 16
    a('s_waitcnt lgkmcnt(0)')
    for i in range(2):
        for q in range(4):
            a(f'ds_read_b128 {vr(RV+16*i+4*q,4)}, v3 offset:{RS + 128*i + 32*q}')
    FR = 216; NFI = 224; NFR = V_CORR
    a('s_waitcnt vmcnt(0)')
    for k in range(8):
        a(f'v_lshl_or_b32 v{FR+k}, v{V_T+2*k+1}, 16, v{V_T+2*k}')
        a(f'v_lshl_or_b32 v{NFI+k}, v{V_T+16+2*k+1}, 16, v{V_T+16+2*k}')
    a('s_mov_b32 s11, 0x80008000')
    for k in range(8):
        a(f'v_xor_b32 v{NFI+k}, s11, v{NFI+k}')
    a('s_waitcnt lgkmcnt(0)')
    CF = V_T
    def cf(i, mh): return CF + 8 * (2 * i + mh)
    for i in range(2):
        for mh in range(2):
            for r in range(16):
                a(f'v_mul_f32 v{acc(i,mh)+r}, v{acc(i,mh)+r}, v{RV+16*i+r}')
            for k in range(8):
                a(f'v_cvt_pk_bf16_f32 v{cf(i,mh)+k}, v{acc(i,mh)+2*k}, v{acc(i,mh)+2*k+1}')
    for k in range(8):
        a(f'v_xor_b32 v{NFR+k}, s11, v{FR+k}')
    a(f'v_lshrrev_b32 v3, 5, v1')
    a(f'v_mul_u32_u24 v3, {4*16*EP}, v3')
    a(f'v_and_b32 v2, 31, v1')
    a(f's_mul_i32 s10, s{S_RB}, {EP}')
    a(f'v_add_u32 v3, s10, v3')
    a(f's_sub_u32 s10, s{S_CB}, 14')
    a(f's_lshl_b32 s10, s10, 7')
    a(f's_lshl_b32 s12, s{S_WC}, 5')
    a(f's_add_u32 s10, s10, s12')
    a(f'v_add3_u32 v4, v3, v2, s10')
    a(f's_lshl_b32 s12, s{S_WR}, 3')
    a(f's_add_u32 s12, s12, {Z_OFF}')
    a(f'v_lshl_add_u32 v4, v4, 4, s12')
    SV = V_FR
    a(f's_cmp_lg_u32 s10, 0')
    a(f's_cbranch_scc1 L_k1_nospecial1')
    a(f'v_cmp_eq_u32 vcc, 0, v2')
    for i in range(2):
        for k in range(8):
            a(f'v_mov_b32 v{SV+8*i+k}, v{cf(i,1)+k}')
    for i in range(2):
        for k in range(8):
            a(f'v_cndmask_b32 v{cf(i,1)+k}, v{cf(i,1)+k}, 0, vcc')
    a('s_nop 1')
    a('L_k1_nospecial1:')
    def zstore(voff):
        for r in range(16):
            t1 = 8 * (r // 4) + (r % 4)
            d = RV + 2 * r
            a(f'v_cvt_pk_bf16_f32 v{d}, v{acc(0,0)+r}, v{acc(1,0)+r}')
            a(f'v_cvt_pk_bf16_f32 v{d+1}, v{acc(0,1)+r}, v{acc(1,1)+r}')
            a(f's_mov_b32 s13, {t1*16*EP*16}')
            a(f'buffer_store_dwordx2 {vr(d,2)}, v{voff}, s[{SRD_WS}:{SRD_WS+3}], s13 offen')
    for i in range(2):
        for (dst, fa, fb) in ((acc(i, 0), FR, NFI), (acc(i, 1), NFI, NFR)):
            d = vr(dst, 16)
            a(f'v_mfma_f32_32x32x16_bf16 {d}, {vr(fa,4)}, {vr(cf(i,0),4)}, 0')
            a(f'v_mfma_f32_32x32x16_bf16 {d}, {vr(fa+4,4)}, {vr(cf(i,0)+4,4)}, {d}')
            a(f'v_mfma_f32_32x32x16_bf16 {d}, {vr(fb,4)}, {vr(cf(i,1),4)}, {d}')
            a(f'v_mfma_f32_32x32x16_bf16 {d}, {vr(fb+4,4)}, {vr(cf(i,1)+4,4)}, {d}')
    zstore(4)
    a(f's_cmp_lg_u32 s10, 0')
    a(f's_cbranch_scc1 L_k1_nospecial2')
    for i in range(2):
        for (dst, fa) in ((acc(i, 0), FR), (acc(i, 1), NFI)):
            d = vr(dst, 16)
            a(f'v_mfma_f32_32x32x16_bf16 {d}, {vr(fa,4)}, {vr(SV+8*i,4)}, 0')
            a(f'v_mfma_f32_32x32x16_bf16 {d}, {vr(fa+4,4)}, {vr(SV+8*i+4,4)}, {d}')
    a(f'v_add_u32 v5, {256*16}, v4')
    a('s_waitcnt vmcnt(0)')
    a('s_nop 7')
    a('s_nop 3')
    a('s_mov_b64 exec, vcc')
    zstore(5)
    a('s_mov_b64 exec, -1')
    a('L_k1_nospecial2:')

def gen_k1(a):
    a('k1_kernel:')
    a('L_k1_start:')
    stamp(a, 0)
    a('s_cmp_ge_u32 s2, 256')
    a('s_cbranch_scc1 L_k1_end')
    a('s_load_dwordx16 s[16:31], s[0:1], 0')
    a('s_load_dwordx8 s[32:39], s[0:1], 64')
    code_prefetch(a, 'k1_kernel', 'K1_CODE_BYTES', 250, 'k1')
    a('v_and_b32 v1, 63, v0')
    a('v_lshrrev_b32 v2, 6, v0')
    a(f'v_readfirstlane_b32 s{S_W}, v2')
    a('s_and_b32 s10, s2, 7')
    a('s_lshr_b32 s11, s2, 3')
    a(f's_and_b32 s{S_RB}, s10, 1')
    a(f's_lshl_b32 s{S_RB}, s{S_RB}, 3')
    a('s_and_b32 s12, s11, 7')
    a(f's_add_u32 s{S_RB}, s{S_RB}, s12')
    a(f's_lshr_b32 s{S_CB}, s10, 1')
    a(f's_lshl_b32 s{S_CB}, s{S_CB}, 2')
    a('s_lshr_b32 s12, s11, 3')
    a(f's_add_u32 s{S_CB}, s{S_CB}, s12')
    a(f's_lshr_b32 s{S_WR}, s{S_W}, 2')
    a(f's_and_b32 s{S_WC}, s{S_W}, 3')
    a(f's_lshl_b32 s10, s{S_W}, 11')
    a(f's_add_u32 s{S_MX}, s10, {XB}')
    a(f's_add_u32 s{S_MW}, s10, {WB}')
    a('v_lshrrev_b32 v2, 3, v1')
    a('v_lshrrev_b32 v3, 4, v1')
    a('v_and_b32 v4, 7, v1')
    a('v_xor_b32 v4, v4, v3')
    a('v_lshlrev_b32 v4, 4, v4')
    a(f's_and_b32 s10, s{S_W}, 1')
    a('s_lshl_b32 s10, s10, 4')
    a('v_add_u32 v5, s10, v2')
    a('v_lshlrev_b32 v5, 16, v5')
    a(f's_lshl_b32 s10, s{S_RB}, 2')
    a(f's_lshr_b32 s11, s{S_W}, 1')
    a('s_add_u32 s10, s10, s11')
    a('s_lshl_b32 s10, s10, 10')
    a(f'v_add3_u32 v{V_XG}, v5, v4, s10')
    a(f'v_xor_b32 v{V_XG+1}, 64, v{V_XG}')
    a(f'v_add_u32 v{V_XG+1}, 0x80000, v{V_XG+1}')
    a('v_and_b32 v5, 31, v1')
    a('v_lshrrev_b32 v6, 5, v1')
    a('v_bfe_u32 v7, v1, 1, 3')
    a('v_xor_b32 v7, v7, v6')
    a(f's_lshl_b32 s10, s{S_WR}, 1')
    a(f's_xor_b32 s10, s10, s{S_WC}')
    a(f's_lshl_b32 s11, s{S_WR}, 13')
    a(f's_add_u32 s11, s11, {XB}')
    a('v_lshl_add_u32 v8, v5, 7, s11')
    for jj in range(4):
        a(f's_xor_b32 s12, s10, {jj}')
        a('s_lshl_b32 s12, s12, 1')
        a('v_xor_b32 v9, s12, v7')
        a(f'v_lshl_add_u32 v{V_XR+jj}, v9, 4, v8')
    a(f's_cmp_ge_u32 s{S_CB}, 14')
    a('s_cbranch_scc1 L_k1_dft')
    a('v_and_b32 v8, 15, v1')
    a('v_lshlrev_b32 v9, 2, v3')
    a('v_xor_b32 v8, v8, v9')
    a('v_lshlrev_b32 v8, 4, v8')
    a(f's_lshl_b32 s11, s{S_W}, 3')
    a('v_add_u32 v9, s11, v3')
    a('v_mul_u32_u24 v9, 3584, v9')
    a(f's_lshl_b32 s11, s{S_CB}, 8')
    a(f'v_add3_u32 v{V_WG}, v9, v8, s11')
    a('v_bfe_u32 v8, v1, 2, 2')
    a('v_lshl_add_u32 v9, v6, 3, v8')
    a('v_lshlrev_b32 v9, 8, v9')
    a(f'v_xor_b32 v8, s{S_WC}, v8')
    a('v_lshl_add_u32 v9, v8, 6, v9')
    a('v_bfe_u32 v8, v1, 4, 1')
    a('v_lshl_add_u32 v9, v8, 5, v9')
    a('v_and_b32 v8, 3, v1')
    a('v_lshl_add_u32 v9, v8, 3, v9')
    for jj in range(4):
        a(f's_xor_b32 s12, s10, {jj}')
        a('s_lshl_b32 s12, s12, 12')
        a(f's_add_u32 s12, s12, {WB}')
        a(f'v_add_u32 v{V_WR+jj}, s12, v9')
        a(f'v_add_u32 v{V_WR2+jj}, 0x10000, v{V_WR+jj}')
    a('s_waitcnt lgkmcnt(0)')
    srd(a, SRD_X, P_X, 2048 * 1024)
    srd(a, SRD_G, P_WG, 512 * 3584)
    srd(a, SRD_U, P_WU, 512 * 3584)
    srd(a, SRD_WS, P_WS, WS_BYTES)
    SD, RR, T = k1_main(a, False)
    k1_epilogue_ffn(a, SD, RR, T)
    stamp(a, 3)
    if STAMP:
        a('s_waitcnt vmcnt(0)')
        stamp(a, 4)
    stamp_store(a, 5, 0, S_W, 2, 8)
    a('s_endpgm')
    a('L_k1_dft:')
    a(f's_lshl_b32 s11, s{S_W}, 4')
    a(f's_sub_u32 s12, s{S_CB}, 14')
    a('s_lshl_b32 s12, s12, 7')
    a('s_add_u32 s11, s11, s12')
    a('v_add_u32 v8, s11, v2')
    a('v_lshl_add_u32 v9, v8, 10, v4')
    a(f'v_xor_b32 v{V_T}, 64, v9')
    a(f'v_add_u32 v{V_T}, 8192, v{V_T}')
    a(f's_lshl_b32 s11, s{S_WC}, 12')
    a(f's_lshl_b32 s12, s{S_WR}, 13')
    a(f's_sub_u32 s11, s11, s12')
    a(f's_add_u32 s11, s11, {WB - XB}')
    for jj in range(4):
        a(f'v_add_u32 v{V_WR+jj}, s11, v{V_XR+jj}')
        a(f'v_add_u32 v{V_WR2+jj}, 0x10000, v{V_WR+jj}')
    a('s_waitcnt lgkmcnt(0)')
    srd(a, SRD_X, P_X, 2048 * 1024)
    srd(a, SRD_WS, P_WS, WS_BYTES)
    srd(a, SRD_SRE, P_SRE, 2048 * 4096)
    srd(a, SRD_SIM, P_SIM, 2048 * 4096)
    for mh, p in enumerate((P_HRE, P_HIM)):
        for u in range(2):
            d = V_WG + 4 * mh + 2 * u
            src = 9 if u == 0 else V_T
            a(f'v_mov_b32 v{d+1}, s{p+1}')
            a(f'v_add_co_u32 v{d}, vcc, s{p}, v{src}')
            a(f'v_addc_co_u32 v{d+1}, vcc, 0, v{d+1}, vcc')
    a(f'v_add_co_u32 v{V_T}, vcc, 0x40000, v{V_WG}')
    a(f'v_addc_co_u32 v{V_T+1}, vcc, 0, v{V_WG+1}, vcc')
    a('v_cmp_eq_u32 vcc, 0, v8')
    a(f'v_cndmask_b32 v{V_WG+4}, v{V_WG+4}, v{V_T}, vcc')
    a(f'v_cndmask_b32 v{V_WG+5}, v{V_WG+5}, v{V_T+1}, vcc')
    SD, RR, T = k1_main(a, True)
    k1_epilogue_dft(a, SD, RR, T)
    stamp(a, 3)
    if STAMP:
        a('s_waitcnt vmcnt(0)')
        stamp(a, 4)
    stamp_store(a, 5, 0, S_W, 2, 8)
    a('L_k1_end:')
    a('s_endpgm')
    a('L_k1_code_end:')

K2_WSTRIDE = 40960
K2_LDS = 4 * K2_WSTRIDE
def gen_k2(a):
    S_W, S_T1, S_CB2, S_LB, S_H0, S_H1, S_WD, S_MIR = 3, 4, 5, 6, 7, 8, 9, 11
    SRD_X, SRD_WD, SRD_OUT, SRD_WS, SRD_SRE, SRD_SIM = 40, 44, 48, 52, 56, 60
    V_HO, V_WDG, V_GG, V_ZO, V_XO, V_WR, V_GR = 10, 11, 12, 16, 17, 18, 20
    V_RED = 21
    V_WF = 32
    V_ACC = 48
    V_D2 = 112
    V_Z = 128
    V_G = 160
    V_X = 192
    V_T = 200
    a('k2_kernel:')
    a('L_k2_start:')
    stamp(a, 0)
    a('s_cmp_ge_u32 s2, 256')
    a('s_cbranch_scc1 L_k2_end')
    a('s_load_dwordx16 s[16:31], s[0:1], 0')
    a('s_load_dwordx8 s[32:39], s[0:1], 64')
    code_prefetch(a, 'k2_kernel', 'K2_CODE_BYTES', 250, 'k2')
    a('v_and_b32 v1, 63, v0')
    a('v_lshrrev_b32 v2, 6, v0')
    a(f'v_readfirstlane_b32 s{S_W}, v2')
    a('s_and_b32 s10, s2, 7')
    a('s_lshr_b32 s12, s2, 3')
    a(f's_lshl_b32 s{S_T1}, s10, 2')
    a('s_and_b32 s10, s12, 3')
    a(f's_add_u32 s{S_T1}, s{S_T1}, s10')
    a(f's_lshr_b32 s{S_CB2}, s12, 2')
    a(f's_mul_i32 s{S_LB}, s{S_W}, {K2_WSTRIDE}')
    a(f's_and_b32 s12, s{S_W}, 1')
    a(f's_lshr_b32 s13, s{S_W}, 1')
    a('s_lshl_b32 s14, s12, 5')
    a(f's_add_u32 s14, s14, s{S_T1}')
    a('s_xor_b32 s15, s14, 32')
    a(f's_mul_i32 s10, s{S_W}, 28')
    a(f's_mul_i32 s{S_H0}, s14, 112')
    a(f's_add_u32 s{S_H0}, s{S_H0}, s10')
    a(f's_lshl_b32 s{S_H0}, s{S_H0}, 10')
    a(f's_mul_i32 s{S_H1}, s15, 112')
    a(f's_add_u32 s{S_H1}, s{S_H1}, s10')
    a(f's_lshl_b32 s{S_H1}, s{S_H1}, 10')
    a(f's_lshl_b32 s{S_WD}, s10, 14')
    a(f'v_lshlrev_b32 v{V_HO}, 4, v1')
    a('v_lshrrev_b32 v2, 3, v1')
    a('v_and_b32 v3, 7, v1')
    a('v_bfe_u32 v4, v1, 4, 1')
    a('v_lshlrev_b32 v4, 2, v4')
    a('v_xor_b32 v4, v3, v4')
    a('v_lshlrev_b32 v4, 4, v4')
    a('v_lshl_add_u32 v4, v2, 10, v4')
    a(f's_lshl_b32 s10, s{S_CB2}, 7')
    a(f'v_add_u32 v{V_WDG}, s10, v4')
    a(f's_lshr_b32 s{S_MIR}, s{S_CB2}, 2')
    a(f's_sub_u32 s15, 0, s{S_MIR}')
    a('v_lshrrev_b32 v5, 4, v1')
    for u in range(4):
        a(f'v_add_u32 v6, {8*u}, v2')
        a('v_lshl_add_u32 v6, v6, 6, s14')
        a('v_xor_b32 v6, s15, v6')
        a(f'v_add_u32 v6, s{S_MIR}, v6')
        a('v_and_b32 v6, 0x7ff, v6')
        a(f'v_add_u32 v7, {4*u}, v5')
        a('v_and_b32 v7, 7, v7')
        a('v_xor_b32 v7, v3, v7')
        a('v_lshlrev_b32 v7, 4, v7')
        a(f'v_lshl_add_u32 v{V_GG+u}, v6, 12, v7')
    a('v_and_b32 v5, 31, v1')
    a('v_lshrrev_b32 v6, 5, v1')
    a(f's_lshl_b32 s10, s{S_CB2}, 6')
    a('s_lshl_b32 s13, s13, 5')
    a('s_add_u32 s10, s10, s13')
    a('v_add_u32 v7, s10, v5')
    a('v_xor_b32 v7, s15, v7')
    a(f'v_add_u32 v7, s{S_MIR}, v7')
    a('v_and_b32 v7, 0x1ff, v7')
    a(f's_xor_b32 s13, s{S_T1}, s15')
    a(f's_add_u32 s13, s13, s{S_MIR}')
    a('s_and_b32 s13, s13, 31')
    a(f's_mul_i32 s13, s13, {16*EP}')
    a(f'v_mul_u32_u24 v8, {EP}, v6')
    a('v_add3_u32 v7, v7, v8, s13')
    a(f'v_lshlrev_b32 v{V_ZO}, 4, v7')
    a('v_lshl_add_u32 v7, v5, 6, s14')
    a('v_lshlrev_b32 v7, 10, v7')
    a('v_lshl_add_u32 v7, v6, 4, v7')
    a('s_lshl_b32 s10, s10, 1')
    a(f'v_add_u32 v{V_XO}, s10, v7')
    a('v_bfe_u32 v7, v1, 2, 2')
    a('v_lshl_add_u32 v8, v6, 2, v7')
    a('v_lshlrev_b32 v8, 7, v8')
    a('v_bfe_u32 v7, v1, 3, 1')
    a(f's_lshr_b32 s13, s{S_W}, 1')
    a('v_xor_b32 v7, s13, v7')
    a('v_lshl_add_u32 v8, v7, 6, v8')
    a('v_bfe_u32 v7, v1, 4, 1')
    a('v_lshl_add_u32 v8, v7, 5, v8')
    a('v_and_b32 v7, 3, v1')
    a('v_lshl_add_u32 v8, v7, 3, v8')
    a(f's_add_u32 s13, s{S_LB}, 8192')
    a(f'v_add_u32 v{V_WR}, s13, v8')
    a(f'v_xor_b32 v{V_WR+1}, 64, v{V_WR}')
    a('v_bfe_u32 v7, v1, 1, 3')
    a('v_lshlrev_b32 v7, 4, v7')
    a('v_lshl_add_u32 v7, v5, 7, v7')
    a('v_lshl_add_u32 v7, v6, 3, v7')
    a(f'v_add_u32 v{V_GR}, s{S_LB}, v7')
    a(f'v_add_u32 v{V_RED+3}, s{S_LB}, v{V_HO}')
    for lq in (1, 2, 3):
        a(f's_xor_b32 s13, s{S_W}, {lq}')
        a(f's_mul_i32 s13, s13, {K2_WSTRIDE}')
        a(f'v_add_u32 v{V_RED+lq-1}, s13, v{V_HO}')
    a('s_waitcnt lgkmcnt(0)')
    srd(a, SRD_X, P_X, 2048 * 1024)
    srd(a, SRD_WD, P_WD, 1792 * 1024)
    srd(a, SRD_OUT, P_OUT, 2048 * 1024)
    srd(a, SRD_WS, P_WS, WS_BYTES)
    srd(a, SRD_SRE, P_SRE, 2048 * 4096)
    srd(a, SRD_SIM, P_SIM, 2048 * 4096)
    def loads(k):
        slot = k % 16
        g = []
        for u in range(2):
            g.append([f's_add_u32 m0, s{S_LB}, {8192 + slot*2048 + u*1024}',
                      f's_add_u32 s10, s{S_WD}, {k*16384 + u*8192}',
                      f'buffer_load_dwordx4 v{V_WDG}, s[{SRD_WD}:{SRD_WD+3}], s10 offen lds'])
        for rg in range(2):
            sh = S_H0 + rg
            pre = [f's_add_u32 s{sh}, s{sh}, 4096'] if (k % 4 == 0 and k > 0) else []
            g.append(pre + [f'buffer_load_dwordx4 {ar(8*k+4*rg,4)}, v{V_HO}, s[{SRD_WS}:{SRD_WS+3}], s{sh} offen offset:{(k%4)*1024}'])
        return g
    def emit(groups):
        for grp in groups:
            for x in grp: a(x)
    for p in range(2):
        a(f'buffer_load_dwordx4 {vr(V_X+4*p,4)}, v{V_XO}, s[{SRD_X}:{SRD_X+3}], 0 offen offset:{32*p}')
    for m, s_ in enumerate((SRD_SRE, SRD_SIM)):
        for u in range(4):
            a(f's_add_u32 m0, s{S_LB}, {m*4096 + u*1024}')
            a(f'buffer_load_dwordx4 v{V_GG+u}, s[{s_}:{s_+3}], 0 offen lds')
    for ks in range(8):
        a(f's_mov_b32 s10, {Z_OFF + ks*2*EP*16}')
        a(f'buffer_load_dwordx4 {vr(V_Z+4*ks,4)}, v{V_ZO}, s[{SRD_WS}:{SRD_WS+3}], s10 offen')
    for k in range(15):
        if k == 11: a('s_waitcnt vmcnt(44)')
        emit(loads(k))
    def reads(k):
        slot = k % 16; s = k % 2
        for ct in range(2):
            for h in range(2):
                a(f'ds_read_b64_tr_b16 {vr(V_WF+8*s+4*ct+2*h,2)}, v{V_WR+ct} offset:{slot*2048 + h*1024}')
    a('s_waitcnt vmcnt(56)')
    stamp(a, 1)
    for ks in range(8):
        a(f'v_xor_b32 v2, {ks*16}, v{V_GR}')
        a(f'ds_read_b64 {vr(V_G+4*ks,2)}, v2')
        a(f'ds_read_b64 {vr(V_G+4*ks+2,2)}, v2 offset:4096')
        if ks == 3 or ks == 7:
            a('s_waitcnt lgkmcnt(0)')
            for k2 in range(ks - 3, ks + 1):
                a(f'v_swap_b32 v{V_G+4*k2+1}, v{V_G+4*k2+2}')
    reads(0)
    for ks in range(8):
        c = '0' if ks == 0 else vr(V_D2, 16)
        a(f'v_mfma_f32_32x32x16_bf16 {vr(V_D2,16)}, {vr(V_Z+4*ks,4)}, {vr(V_G+4*ks,4)}, {c}')
    for k in range(28):
        a.c(f'---- kstep {k}')
        if k + 1 < 28:
            allowed = (min(27, k + 14) - (k + 1)) * 4
            a(f's_waitcnt vmcnt({allowed})')
            reads(k + 1)
            a('s_waitcnt lgkmcnt(4)')
        else:
            a('s_waitcnt lgkmcnt(0)')
        ld = loads(k + 15) if k + 15 < 28 else [[], [], [], []]
        s = k % 2
        n = 0
        for rg in range(2):
            for ct in range(2):
                lq = rg + 2 * ct
                d = vr(V_ACC + 16 * lq, 16)
                c = '0' if k == 0 else d
                a(f'v_mfma_f32_32x32x16_bf16 {d}, {vr(V_WF+8*s+4*ct,4)}, {ar(8*k+4*rg,4)}, {c}')
                for x in ld[n]: a(x)
                n += 1
    stamp(a, 2)
    for lq in (1, 2, 3):
        for rr in range(4):
            a(f'ds_write_b128 v{V_RED+3}, {vr(V_ACC+16*lq+4*rr,4)} offset:{(lq-1)*4096 + rr*1024}')
    for p in range(2):
        a(f'v_permlane32_swap_b32 v{V_X+4*p}, v{V_X+4*p+2}')
        a(f'v_permlane32_swap_b32 v{V_X+4*p+1}, v{V_X+4*p+3}')
    XF = V_Z
    for k in range(8):
        a(f'v_lshlrev_b32 v{XF+2*k}, 16, v{V_X+k}')
        a(f'v_and_b32 v{XF+2*k+1}, 0xffff0000, v{V_X+k}')
    a('s_waitcnt lgkmcnt(0)')
    a('s_barrier')
    for lq in (1, 2, 3):
        for rr in range(4):
            a(f'ds_read_b128 {vr(V_ACC+16*lq+4*rr,4)}, v{V_RED+lq-1} offset:{(lq-1)*4096 + rr*1024}')
    a('s_waitcnt lgkmcnt(4)')
    for r in range(0, 16, 2):
        a(f'v_pk_add_f32 {vr(V_ACC+r,2)}, {vr(V_ACC+r,2)}, {vr(V_ACC+16+r,2)}')
    for r in range(0, 16, 2):
        a(f'v_pk_add_f32 {vr(V_ACC+r,2)}, {vr(V_ACC+r,2)}, {vr(V_ACC+32+r,2)}')
    a('s_waitcnt lgkmcnt(0)')
    for r in range(0, 16, 2):
        a(f'v_pk_add_f32 {vr(V_ACC+r,2)}, {vr(V_ACC+r,2)}, {vr(V_ACC+48+r,2)}')
    TT = V_G
    for r in range(16): a(f'v_mul_f32 v{TT+r}, {fx(-math.log2(math.e))}, v{V_ACC+r}')
    for r in range(16):
        a(f'v_exp_f32 v{TT+r}, v{TT+r}')
        a(f'v_mul_f32 v{V_D2+r}, v{V_D2+r}, v{V_ACC+r}')
    for r in range(16): a(f'v_add_f32 v{TT+r}, 1.0, v{TT+r}')
    for r in range(16): a(f'v_rcp_f32 v{TT+r}, v{TT+r}')
    for r in range(16): a(f'v_fma_f32 v{XF+r}, v{V_D2+r}, v{TT+r}, v{XF+r}')
    for k in range(8): a(f'v_cvt_pk_bf16_f32 v{V_X+k}, v{XF+2*k}, v{XF+2*k+1}')
    for p in range(2):
        a(f'v_permlane32_swap_b32 v{V_X+4*p}, v{V_X+4*p+2}')
        a(f'v_permlane32_swap_b32 v{V_X+4*p+1}, v{V_X+4*p+3}')
        a(f'buffer_store_dwordx4 {vr(V_X+4*p,4)}, v{V_XO}, s[{SRD_OUT}:{SRD_OUT+3}], 0 offen offset:{32*p}')
    stamp(a, 3)
    if STAMP:
        a('s_waitcnt vmcnt(0)')
        stamp(a, 4)
    stamp_store(a, 5, 1, S_W, 2, 4)
    a('L_k2_end:')
    a('s_endpgm')
    a('L_k2_code_end:')

def kd(name, vgpr, accum, sgpr=96):
    return f""".p2align 6
.amdhsa_kernel {name}
  .amdhsa_next_free_vgpr {vgpr}
  .amdhsa_next_free_sgpr {sgpr}
  .amdhsa_accum_offset {accum}
  .amdhsa_group_segment_fixed_size 0
  .amdhsa_kernarg_size 96
  .amdhsa_user_sgpr_count 2
  .amdhsa_user_sgpr_kernarg_segment_ptr 1
  .amdhsa_system_sgpr_workgroup_id_x 1
.end_amdhsa_kernel
"""

hdr = open('recurrent_scan__spectral_fnet__geglu_ffn__prompt.s.ref').read().split('; Override launch')[0]
a1 = Asm(); gen_k1(a1); t1 = a1.finish()
a2 = Asm(); gen_k2(a2); t2 = a2.finish()
txt = hdr
txt += f'; @launch kernel=k1_kernel grid=(256,1,1) block=(512,1,1) lds={K1_LDS}\n'
txt += f'; @launch kernel=k2_kernel grid=(256,1,1) block=(256,1,1) lds={K2_LDS}\n'
txt += '.amdgcn_target "amdgcn-amd-amdhsa--gfx950"\n.text\n'
txt += '.globl k1_kernel\n.p2align 8\n.type k1_kernel,@function\n' + t1
txt += '.globl k2_kernel\n.p2align 8\n.type k2_kernel,@function\n' + t2
txt += '.section .rodata,"a"\n' + kd('k1_kernel', 256, 256) + kd('k2_kernel', 480, 256)
import subprocess, re
def sizes(t):
    open('_p1.s','w').write(t.replace('K1_CODE_BYTES','0x1000').replace('K2_CODE_BYTES','0x1000'))
    subprocess.check_call(['clang','-x','assembler','-target','amdgcn-amd-amdhsa','-mcpu=gfx950','-c','_p1.s','-o','_p1.o'])
    o = subprocess.check_output(['llvm-readelf','-s','_p1.o']).decode()
    sym = {}
    for ln in o.splitlines():
        f = ln.split()
        if len(f) == 8:
            try: sym[f[7]] = int(f[1], 16)
            except ValueError: pass
    return sym
sym = sizes(txt)
k1b = sym['L_k1_code_end'] - sym['L_k1_start'] - 128
k2b = sym['L_k2_code_end'] - sym['L_k2_start'] - 128
print('code bytes', k1b + 128, k2b + 128)
assert k1b <= 512 * 128 and k2b <= 256 * 128
txt = txt.replace('K1_CODE_BYTES', hex(k1b)).replace('K2_CODE_BYTES', hex(k2b))
open(OUT, 'w').write(txt)
print('wrote', OUT, len(txt), 'bytes; pads', a1.npad, a2.npad)
```
